```python
import torch

def _softmax(x, axis=-1):
    return torch.softmax(x, dim=axis)
def _gelu(x):
    return torch.nn.functional.gelu(x, approximate="tanh")
def _silu(x):
    return torch.nn.functional.silu(x)
def _sigmoid(x):
    return torch.sigmoid(x)
def _layernorm(x, axis=-1, eps=1e-5):
    m = x.mean(dim=axis, keepdim=True)
    v = x.var(dim=axis, keepdim=True, unbiased=False)
    return (x - m) / torch.sqrt(v + eps)
def _scatter_add(tgt, idx, src, axis=0):
    return tgt.clone().index_add_(axis, idx, src)
def _segment_sum(src, seg, n):
    out = torch.zeros((n,) + src.shape[1:], dtype=src.dtype)
    return out.index_add_(0, seg, src)
def _pad(x, pw):
    flat = tuple(v for pair in reversed(pw) for v in pair)
    return torch.nn.functional.pad(x, flat)

kernel_name = 'parallel_sum__ssm_conv_s4d__glu_gated_swiglu__prompt'

def setup_inputs():

    _w = (lambda a: (lambda t: t.to(torch.bfloat16) if t.is_floating_point() else t)(torch.as_tensor(a)))
    def _A_setup():
        Bsz, L, D, N = 1, 2048, 640, 128
        return {
            "u": _w((lambda *s: torch.randn(*s, dtype=torch.bfloat16) * 0.05)(Bsz, L, D)),
            "log_A_real": _w((lambda *s: torch.randn(*s, dtype=torch.bfloat16) * 3.2)(D, N) * 0.5),
            "A_imag": _w((lambda *s: torch.randn(*s, dtype=torch.bfloat16) * 0.05)(D, N) * 3.14),
            "C_real": _w((lambda *s: torch.randn(*s, dtype=torch.bfloat16) * 0.2)(D, N) / N ** 0.5),
            "C_imag": _w((lambda *s: torch.randn(*s, dtype=torch.bfloat16) * 0.2)(D, N) / N ** 0.5),
            "log_dt": _w((lambda *s: torch.randn(*s, dtype=torch.bfloat16) * 0.05)(D) * 0.5 - 4.0),
            "D_skip": _w((lambda *s: torch.randn(*s, dtype=torch.bfloat16) * 0.05)(D)),
        }
    _A_in = _A_setup()

    def _B_setup():
        B, S, D, F = 1, 2048, 640, 1728
        return {
            "x": _w((lambda *s: torch.randn(*s, dtype=torch.bfloat16) * 0.05)(B, S, D)),
            "w1": _w((lambda *s: torch.randn(*s, dtype=torch.bfloat16) * 0.4)(D, F) * (2.0 / D) ** 0.5),
            "w3": _w((lambda *s: torch.randn(*s, dtype=torch.bfloat16) * 0.4)(D, F) * (2.0 / D) ** 0.5),
            "w2": _w((lambda *s: torch.randn(*s, dtype=torch.bfloat16) * 0.4)(F, D) * (2.0 / F) ** 0.5),
        }
    _B_in = _B_setup()

    return {
        "A_u": _A_in["u"],
        "A_log_A_real": _A_in["log_A_real"],
        "A_A_imag": _A_in["A_imag"],
        "A_C_real": _A_in["C_real"],
        "A_C_imag": _A_in["C_imag"],
        "A_log_dt": _A_in["log_dt"],
        "A_D_skip": _A_in["D_skip"],
        "B_x": _B_in["x"],
        "B_w1": _B_in["w1"],
        "B_w3": _B_in["w3"],
        "B_w2": _B_in["w2"],
    }

def reference(A_u, A_log_A_real, A_A_imag, A_C_real, A_C_imag, A_log_dt, A_D_skip, B_x, B_w1, B_w3, B_w2):
    def _A_ref(u, log_A_real, A_imag, C_real, C_imag, log_dt, D_skip):
        L = u.shape[1]
        dt = torch.exp(log_dt)
        A = -torch.exp(log_A_real) + 1j * A_imag
        C = (C_real + 1j * C_imag) * dt[:, None]
        pos = (lambda x, dt: x.to(dt))(torch.arange(L), log_dt.dtype)
        P = torch.exp((A * dt[:, None])[:, :, None] * pos[None, None, :])
        K = 2.0 * torch.einsum("dn,dnl->dl", C, P).real
        L2 = 2 * L
        u_t = (lambda x, *d: x.permute(*d))(u, 0, 2, 1)
        Kf = (lambda x, *a, **k: torch.fft.rfft(x.float(), *a, **k))(K, L2)
        Uf = (lambda x, *a, **k: torch.fft.rfft(x.float(), *a, **k))(u_t, L2)
        y = (lambda x, *a, **k: torch.fft.irfft(x, *a, **k).to(torch.bfloat16))(Uf * Kf[None, :, :], L2)[:, :, :L]
        y = (lambda x, *d: x.permute(*d))(y, 0, 2, 1)
        return y + u * D_skip[None, None, :]

    def _B_ref(x, w1, w3, w2):
        gate = torch.einsum("bsd,df->bsf", x, w1)
        up = torch.einsum("bsd,df->bsf", x, w3)
        h = _silu(gate) * up
        out = torch.einsum("bsf,fd->bsd", h, w2)
        return out

    x = A_u
    xn = _layernorm(x, axis=-1)
    return x + _A_ref(xn, A_log_A_real, A_A_imag, A_C_real, A_C_imag, A_log_dt, A_D_skip) + _B_ref(xn, B_w1, B_w3, B_w2)
```

```python
class Asm:
    def __init__(self):
        self.lines = []
        self._lab = 0
    def e(self, s):
        if isinstance(s, (list, tuple)):
            for x in s: self.e(x)
        else:
            self.lines.append("    " + s)
    def label(self, name):
        self.lines.append(name + ":")
    def raw(self, s):
        self.lines.append(s)
    def newlabel(self, p="L"):
        self._lab += 1
        return f"{p}_{self._lab}"
    def c(self, s):
        self.lines.append("    ; " + s)
    def text(self):
        return "\n".join(self.lines) + "\n"

def v(a, n=1):
    return f"v{a}" if n == 1 else f"v[{a}:{a+n-1}]"
def s(a, n=1):
    return f"s{a}" if n == 1 else f"s[{a}:{a+n-1}]"

def srd(A, d, base, nbytes):
    A.e(f"s_mov_b32 s{d}, s{base}")
    A.e(f"s_mov_b32 s{d+1}, s{base+1}")
    A.e(f"s_mov_b32 s{d+2}, {nbytes}")
    A.e(f"s_mov_b32 s{d+3}, 0x20000")

def srd_off(A, d, base, off, nbytes):
    A.e(f"s_add_u32 s{d}, s{base}, {off}")
    A.e(f"s_addc_u32 s{d+1}, s{base+1}, 0")
    A.e(f"s_mov_b32 s{d+2}, {nbytes}")
    A.e(f"s_mov_b32 s{d+3}, 0x20000")

def spread(A, M, others, frac=0.75):
    n = len(M); k = len(others)
    span = max(1, int(n * frac))
    idx = 0
    for i, m in enumerate(M):
        A.e(m)
        while idx < k and idx * span < (i + 1) * k:
            A.e(others[idx]); idx += 1
    while idx < k:
        A.e(others[idx]); idx += 1

def kernel_begin(A, name):
    A.raw(f".globl {name}")
    A.raw(".p2align 8")
    A.raw(f".type {name},@function")
    A.label(name)

def descriptor(name, vgpr, sgpr=102, accum=None):
    if accum is None: accum = min(256, (vgpr + 3) // 4 * 4)
    return f""".amdhsa_kernel {name}
  .amdhsa_next_free_vgpr {vgpr}
  .amdhsa_next_free_sgpr {sgpr}
  .amdhsa_accum_offset {accum}
  .amdhsa_group_segment_fixed_size 0
  .amdhsa_kernarg_size 112
  .amdhsa_user_sgpr_count 2
  .amdhsa_user_sgpr_kernarg_segment_ptr 1
  .amdhsa_system_sgpr_workgroup_id_x 1
.end_amdhsa_kernel
"""
```

```python
from asm import *
import struct
def f2u(x): return struct.unpack('<I', struct.pack('<f', x))[0]
def fl(x): return hex(f2u(x))

L = 2048; D = 640; F = 1728
WS_STATS = 0
WS_XNT   = 0x10000
WS_KC    = WS_XNT + D * 4096
KC_STRIDE = 1408
WS_W2T   = WS_KC + D * KC_STRIDE + 0x800
WS_W2T   = (WS_W2T + 4095) // 4096 * 4096
WS_H     = WS_W2T + F * D * 2
WS_YT    = WS_H + L * F * 2
WS_END   = WS_YT + D * 4096
LOG2E = 1.4426950408889634

P_U, P_LOGA, P_AIM, P_CRE, P_CIM, P_LOGDT, P_DSK, P_BX = 16, 18, 20, 22, 24, 26, 28, 30
P_W1, P_W3, P_W2, P_OUT = 32, 34, 36, 38
P_DBG, P_WS = 40, 42
S_W = 3

def prologue(A):
    A.e("s_load_dwordx16 s[16:31], s[0:1], 0")
    A.e("s_load_dwordx8 s[32:39], s[0:1], 64")
    A.e("s_load_dwordx4 s[40:43], s[0:1], 96")
    A.e("v_lshrrev_b32 v1, 6, v0")
    A.e("v_and_b32 v0, 63, v0")
    A.e(f"v_readfirstlane_b32 s{S_W}, v1")

LN_STRIDE = 1312
def gen_ln(A, s_blk, sc1=False):
    srd(A, 44, P_U, L * D * 2)
    srd_off(A, 48, P_WS, WS_STATS, L * 16)
    srd_off(A, 52, P_WS, WS_XNT, D * 4096)
    A.e(f"s_lshl_b32 s56, s{s_blk}, 3")
    A.e(f"s_add_u32 s56, s56, s{S_W}")
    A.e("s_mul_i32 s57, s56, 10240")
    A.e("v_lshrrev_b32 v1, 3, v0")
    A.e("v_and_b32 v2, 7, v0")
    A.e("v_lshlrev_b32 v2, 4, v2")
    A.e("v_mul_u32_u24 v3, 1280, v1")
    A.e("v_add_u32 v3, v3, v2")
    R = 20; X = 60
    for i in range(10):
        A.e(f"buffer_load_dwordx4 {v(R+4*i,4)}, v3, s[44:47], s57 offen offset:{i*128}")
    A.e(f"v_mul_u32_u24 v4, {LN_STRIDE}, v1")
    A.e("v_add_u32 v4, v4, v2")
    A.e(f"s_mul_i32 s58, s{S_W}, {8*LN_STRIDE+128}")
    A.e("v_add_u32 v4, s58, v4")
    A.e("s_mov_b32 s59, 0xffff0000")
    for i in range(10):
        A.e(f"s_waitcnt vmcnt({9-i})")
        for j in range(4):
            k = 4*i + j
            A.e(f"v_lshlrev_b32 v{X+2*k}, 16, v{R+k}")
            A.e(f"v_and_b32 v{X+2*k+1}, s59, v{R+k}")
        for j in range(4):
            k = 4*i + j
            acc = 8 + 2*(j & 1)
            if i == 0 and j < 2:
                continue
            if i == 0:
                A.e(f"v_pk_add_f32 {v(acc,2)}, {v(X+2*(k-2),2)}, {v(X+2*k,2)}")
            else:
                A.e(f"v_pk_add_f32 {v(acc,2)}, {v(acc,2)}, {v(X+2*k,2)}")
    def reduce8(dst):
        A.e("v_pk_add_f32 v[8:9], v[8:9], v[10:11]")
        A.e("s_nop 0")
        A.e(f"v_add_f32 v{dst}, v8, v9")
        for m in ("quad_perm:[1,0,3,2]", "quad_perm:[2,3,0,1]", "row_half_mirror"):
            A.e("s_nop 1")
            A.e(f"v_add_f32_dpp v{dst}, v{dst}, v{dst} {m} row_mask:0xf bank_mask:0xf")
    reduce8(12)
    A.e(f"v_mul_f32 v12, {fl(1.0/640)}, v12")
    A.e("v_cvt_pk_bf16_f32 v14, v12, v12")
    A.e("v_lshlrev_b32 v14, 16, v14")
    A.e("v_sub_f32 v13, v12, v14")
    for k in range(40):
        A.e(f"v_pk_add_f32 {v(X+2*k,2)}, {v(X+2*k,2)}, v[14:15] op_sel_hi:[1,0] neg_lo:[0,1] neg_hi:[0,1]")
    for k in range(40):
        acc = 8 + 2*(k & 1)
        if k < 2: A.e(f"v_pk_mul_f32 {v(acc,2)}, {v(X+2*k,2)}, {v(X+2*k,2)}")
        else: A.e(f"v_pk_fma_f32 {v(acc,2)}, {v(X+2*k,2)}, {v(X+2*k,2)}, {v(acc,2)}")
    reduce8(12)
    A.e(f"v_mul_f32 v12, {fl(1.0/640)}, v12")
    A.e("v_fma_f32 v12, -v13, v13, v12")
    A.e("v_max_f32 v12, 0, v12")
    A.e("v_cvt_pk_bf16_f32 v12, v12, v12")
    A.e("v_lshlrev_b32 v12, 16, v12")
    A.e(f"v_add_f32 v12, {fl(1e-5)}, v12")
    A.e("v_cvt_pk_bf16_f32 v12, v12, v12")
    A.e("v_lshlrev_b32 v12, 16, v12")
    A.e("v_sqrt_f32 v12, v12")
    A.e("s_nop 0")
    A.e("v_cvt_pk_bf16_f32 v12, v12, v12")
    A.e("v_lshlrev_b32 v12, 16, v12")
    A.e("v_rcp_f32 v15, v12")
    A.e("v_mul_f32 v18, v12, v12")
    A.e("v_mov_b32 v16, v14")
    A.e(f"v_mul_f32 v17, {fl(-LOG2E)}, v15")
    A.e("v_mov_b32 v19, v15")
    A.e("v_lshlrev_b32 v5, 4, v1")
    A.e("s_lshl_b32 s57, s56, 7")
    A.e(f"buffer_store_dwordx4 v[16:19], v5, s[48:51], s57 offen" + (" sc1" if sc1 else ""))
    for i in range(10):
        for j in range(4):
            k = 4*i + j
            A.e(f"v_pk_mul_f32 {v(X+2*k,2)}, {v(X+2*k,2)}, v[14:15] op_sel:[0,1] op_sel_hi:[1,1]")
        for j in range(4):
            k = 4*i + j
            A.e(f"v_cvt_pk_bf16_f32 v{R+k}, v{X+2*k}, v{X+2*k+1}")
        A.e(f"ds_write_b128 v4, {v(R+4*i,4)} offset:{i*128}")
    return

def gen_ln_part2(A, s_blk):
    A.e("v_lshrrev_b32 v1, 4, v0")
    A.e("v_and_b32 v2, 15, v0")
    A.e("v_lshrrev_b32 v3, 2, v2")
    A.e("v_and_b32 v5, 3, v0")
    A.e(f"v_mul_u32_u24 v4, {8*LN_STRIDE+128}, v1")
    A.e(f"v_mul_u32_u24 v3, {LN_STRIDE}, v3")
    A.e("v_add_u32 v4, v4, v3")
    A.e("v_lshl_add_u32 v4, v5, 3, v4")
    A.e(f"s_lshl_b32 s58, s{S_W}, 5")
    A.e("v_add_u32 v4, s58, v4")
    A.e("v_lshlrev_b32 v6, 12, v2")
    A.e("v_lshl_add_u32 v6, v1, 4, v6")
    A.e(f"s_lshl_b32 s57, s{S_W}, 16")
    A.e(f"s_lshl_b32 s58, s{s_blk}, 7")
    A.e("s_add_u32 s57, s57, s58")
    A.e("s_waitcnt lgkmcnt(0)")
    A.e("s_barrier")
    R = 20
    n = 0
    for i in range(5):
        for hf in range(2):
            for jj in range(2):
                off = hf*(32*LN_STRIDE+512) + jj*4*LN_STRIDE + i*256
                A.e(f"ds_read_b64_tr_b16 {v(R+4*n+2*jj,2)}, v4 offset:{off}")
            n += 1
        if i >= 2:
            pass
    n = 0
    for i in range(5):
        for hf in range(2):
            rem = 20 - 2*(n+1)
            A.e(f"s_waitcnt lgkmcnt({min(rem,15)})")
            A.e(f"buffer_store_dwordx4 {v(R+4*n,4)}, v6, s[52:55], s57 offen offset:{hf*64}")
            n += 1
        A.e(f"s_add_u32 s57, s57, {8*16*4096}")

KG_ROW = 528
KG_BUFA = 0
KG_BUFB = 21 * KG_ROW
KG_LDS = KG_BUFB + 16 * KG_ROW + 11*KG_ROW*0
def cmul(A, dst, x, z, conj=False, tmp=None):
    t = dst if tmp is None else tmp
    if not conj:
        return [f"v_pk_mul_f32 {v(t,2)}, {v(x,2)}, {v(z,2)} op_sel:[0,0] op_sel_hi:[0,1]",
                f"v_pk_fma_f32 {v(dst,2)}, {v(x,2)}, {v(z,2)}, {v(t,2)} op_sel:[1,1,0] op_sel_hi:[1,0,1] neg_lo:[1,0,0]"]
    else:
        return [f"v_pk_mul_f32 {v(t,2)}, {v(x,2)}, {v(z,2)} op_sel:[0,0] op_sel_hi:[0,1] neg_hi:[1,0]",
                f"v_pk_fma_f32 {v(dst,2)}, {v(x,2)}, {v(z,2)}, {v(t,2)} op_sel:[1,1,0] op_sel_hi:[1,0,1]"]

def gen_kgen_setup(A, lds_base_sgpr):
    srd(A, 60, P_LOGA, D*256); srd(A, 64, P_AIM, D*256); srd(A, 68, P_CRE, D*256); srd(A, 72, P_CIM, D*256)
    srd(A, 76, P_LOGDT, D*2)
    srd_off(A, 80, P_WS, WS_KC, D*KC_STRIDE)
    A.e("v_lshlrev_b32 v2, 2, v0")
    A.e("v_lshlrev_b32 v3, 3, v0")
    A.e(f"v_add_u32 v3, s{lds_base_sgpr}, v3")
    A.e("v_and_b32 v10, 15, v0")
    A.e("v_lshrrev_b32 v11, 4, v0")
    A.e(f"v_mul_u32_u24 v4, {KG_ROW}, v10")
    A.e("v_lshl_add_u32 v4, v11, 4, v4")
    A.e(f"v_add_u32 v4, s{lds_base_sgpr}, v4")
    A.e("v_lshlrev_b32 v5, 4, v10"); A.e("v_lshl_add_u32 v5, v11, 3, v5")
    A.e("v_mov_b32 v12, 256"); A.e("v_mov_b32 v13, 4")
    A.e("v_lshlrev_b32 v14, 3, v10"); A.e("v_add_u32 v14, 512, v14")
    A.e("v_cmp_eq_u32 vcc, 2, v11"); A.e("v_mov_b32 v15, 128"); A.e("s_nop 0")
    A.e("v_cndmask_b32 v5, v5, v14, vcc"); A.e("v_cndmask_b32 v12, v12, v15, vcc")
    A.e("v_lshlrev_b32 v14, 2, v10"); A.e("v_add_u32 v14, 768, v14")
    A.e("v_cmp_eq_u32 vcc, 3, v11"); A.e("v_mov_b32 v16, 64"); A.e("s_nop 0")
    A.e("v_cndmask_b32 v5, v5, v14, vcc"); A.e("v_cndmask_b32 v12, v12, v16, vcc"); A.e("v_cndmask_b32 v13, v13, v15, vcc")
    A.e("v_add_u32 v6, v5, v13")
    A.e("v_add_u32 v7, v5, v12")
    A.e("v_add_u32 v8, v6, v12")
    A.e("v_lshlrev_b32 v9, 6, v10"); A.e("v_lshl_add_u32 v9, v11, 3, v9"); A.e("v_add_u32 v9, 1024, v9")
    A.e("v_cmp_lt_u32 vcc, 4, v10"); A.e("v_mov_b32 v14, 0x40000000"); A.e("s_nop 0")
    A.e("v_cndmask_b32 v9, v9, v14, vcc")

def gen_kgen_loads(A, s_ch, R):
    A.e(f"s_lshl_b32 s84, s{s_ch}, 8")
    A.e(f"s_lshl_b32 s85, s{s_ch}, 1")
    A.e(f"buffer_load_ushort v{R+4}, off, s[76:79], s85")
    A.e(f"buffer_load_dword v{R}, v2, s[60:63], s84 offen")
    A.e(f"buffer_load_dword v{R+1}, v2, s[64:67], s84 offen")
    A.e(f"buffer_load_dword v{R+2}, v2, s[68:71], s84 offen")
    A.e(f"buffer_load_dword v{R+3}, v2, s[72:75], s84 offen")

def gen_kgen_body(A, s_ch, R):
    A.e("s_mov_b32 s86, 0xffff0000")
    A.e(f"s_mov_b32 s87, {fl(LOG2E)}")
    A.e(f"v_lshlrev_b32 v20, 16, v{R+4}")
    A.e(f"v_lshlrev_b32 v22, 16, v{R}")
    A.e(f"v_and_b32 v23, s86, v{R}")
    A.e("v_mul_f32 v20, s87, v20"); A.e("v_mul_f32 v22, s87, v22"); A.e("v_mul_f32 v23, s87, v23")
    A.e("v_exp_f32 v20, v20"); A.e("v_exp_f32 v22, v22"); A.e("v_exp_f32 v23, v23")
    A.e(f"v_lshlrev_b32 v24, 16, v{R+1}")
    A.e(f"v_and_b32 v25, s86, v{R+1}")
    A.e("v_cvt_pk_bf16_f32 v20, v20, v20")
    A.e("v_cvt_pk_bf16_f32 v23, v22, v23")
    A.e("v_lshlrev_b32 v20, 16, v20")
    A.e("v_lshlrev_b32 v22, 16, v23"); A.e("v_and_b32 v23, s86, v23")
    A.e("v_mul_f32 v22, v22, v20"); A.e("v_mul_f32 v23, v23, v20")
    A.e("v_mul_f32 v24, v24, v20"); A.e("v_mul_f32 v25, v25, v20")
    A.e(f"v_mul_f32 v22, {fl(-LOG2E)}, v22"); A.e(f"v_mul_f32 v23, {fl(-LOG2E)}, v23")
    A.e("v_mul_f32 v24, 0.15915494, v24"); A.e("v_mul_f32 v25, 0.15915494, v25")
    A.e("v_add_f32 v21, v20, v20")
    A.e(f"v_lshlrev_b32 v40, 16, v{R+2}"); A.e(f"v_and_b32 v42, s86, v{R+2}")
    A.e(f"v_lshlrev_b32 v41, 16, v{R+3}"); A.e(f"v_and_b32 v43, s86, v{R+3}")
    A.e("v_pk_mul_f32 v[40:41], v[40:41], v[20:21] op_sel:[0,1] op_sel_hi:[1,1] neg_hi:[1,0]")
    A.e("v_pk_mul_f32 v[42:43], v[42:43], v[20:21] op_sel:[0,1] op_sel_hi:[1,1] neg_hi:[1,0]")
    Z = {1: 28, 8: 32, 256: 36}
    for m, zr in Z.items():
        for n in range(2):
            a, p = 44 + 2*n, 45 + 2*n
            if m == 1:
                A.e(f"v_exp_f32 v{a}, v{22+n}")
                A.e(f"v_fract_f32 v{p}, v{24+n}")
            else:
                A.e(f"v_mul_f32 v{a}, {fl(float(m))}, v{22+n}")
                A.e(f"v_mul_f32 v{p}, {fl(float(m))}, v{24+n}")
                A.e(f"v_exp_f32 v{a}, v{a}")
                A.e(f"v_fract_f32 v{p}, v{p}")
        for n in range(2):
            A.e(f"v_cos_f32 v{zr+2*n}, v{45+2*n}")
            A.e(f"v_sin_f32 v{zr+2*n+1}, v{45+2*n}")
        A.e("s_nop 0")
        for n in range(2):
            A.e(f"v_pk_mul_f32 {v(zr+2*n,2)}, {v(zr+2*n,2)}, {v(44+2*n,2)} op_sel_hi:[1,0]")
    wr = [0]
    def put(buf, row, x):
        t = 60 + 2*(wr[0] & 1); wr[0] += 1
        A.e(f"v_cvt_pk_bf16_f32 v{t}, v{x}, v{x+1}")
        A.e(f"v_cvt_pk_bf16_f32 v{t+1}, v{x+2}, v{x+3}")
        A.e(f"ds_write_b64 v3, {v(t,2)} offset:{buf + row*KG_ROW}")
    def mul2(dst, x, z, conj):
        a = cmul(A, dst, x, z, conj); b = cmul(A, dst+2, x+2, z+2, conj)
        A.e([a[0], b[0], a[1], b[1]])
    cur, nxt = 40, 44
    for hi in range(8):
        put(KG_BUFA, hi, cur)
        if hi == 0:
            mul2(48, cur, 36, True); put(KG_BUFA, 8, 48)
            mul2(52, 48, 36, True); put(KG_BUFA, 12, 52)
            mul2(48, 52, 36, True); put(KG_BUFA, 14, 48)
            a, b = 48, 52
            for r in range(16, 21):
                mul2(b, a, 36, True); put(KG_BUFA, r, b); a, b = b, a
        elif hi in (2, 6):
            mul2(48, cur, 36, True); put(KG_BUFA, 8 + hi//2, 48)
        elif hi == 4:
            mul2(48, cur, 36, True); put(KG_BUFA, 10, 48)
            mul2(52, 48, 36, True); put(KG_BUFA, 13, 52)
            mul2(48, 52, 36, True); put(KG_BUFA, 15, 48)
        if hi < 7:
            mul2(nxt, cur, 28, True); cur, nxt = nxt, cur
    G0, G1, FR = 64, 96, 128
    rd = []
    for sidx in range(8):
        rd.append(f"ds_read_b128 {v(G0+4*sidx,4)}, v4 offset:{KG_BUFA + sidx*64}")
        rd.append(f"ds_read_b128 {v(G1+4*sidx,4)}, v4 offset:{KG_BUFA + 16*KG_ROW + sidx*64}")
    A.e("v_mov_b32 v60, 0x3f80"); A.e("v_mov_b32 v61, 0x3f80")
    A.e(f"ds_write_b64 v3, v[60:61] offset:{KG_BUFB}")
    wr[0] = 1
    put(KG_BUFB, 1, 32)
    cur, nxt = 32, 40
    def step():
        nonlocal cur, nxt
        mul2(nxt, cur, 32, False)
        cur, nxt = nxt, (44 if nxt == 40 else 40)
    for j in range(2, 16):
        step(); put(KG_BUFB, j, cur)
        if rd: A.e(rd.pop(0))
        if rd and j < 4: A.e(rd.pop(0))
    assert not rd
    ACC = 192
    for i in range(16): A.e(f"v_mov_b32 v{ACC+i}, 0")
    rd = [f"ds_read_b128 {v(FR+4*sidx,4)}, v4 offset:{KG_BUFB + sidx*64}" for sidx in range(8)]
    A.e(rd)
    mf = []
    for sidx in range(8):
        mf.append(f"v_mfma_f32_16x16x32_bf16 {v(ACC,4)}, {v(G0+4*sidx,4)}, {v(FR+4*sidx,4)}, {v(ACC,4)}")
        mf.append(f"v_mfma_f32_16x16x32_bf16 {v(ACC+4,4)}, {v(FR+4*sidx,4)}, {v(G1+4*sidx,4)}, {v(ACC+4,4)}")
    for j in range(16, 32):
        step(); put(KG_BUFA, j - 16, cur)
        if j == 19: A.e("s_waitcnt lgkmcnt(4)")
        if j >= 19:
            for _ in range(2):
                if mf: A.e(mf.pop(0))
    assert not mf
    FR2 = 160
    A.e([f"ds_read_b128 {v(FR2+4*sidx,4)}, v4 offset:{KG_BUFA + sidx*64}" for sidx in range(8)])
    A.e(f"s_mul_i32 s84, s{s_ch}, {KC_STRIDE}")
    def outp(c):
        a = ACC + 8*c
        A.e(f"v_cvt_pk_bf16_f32 v48, v{a}, v{a+1}"); A.e(f"v_cvt_pk_bf16_f32 v49, v{a+2}, v{a+3}")
        A.e(f"v_cvt_pk_bf16_f32 v50, v{a+4}, v{a+5}"); A.e(f"v_cvt_pk_bf16_f32 v51, v{a+6}, v{a+7}")
        A.e(f"buffer_store_dword v48, v{5+2*c}, s[80:83], s84 offen")
        A.e(f"buffer_store_dword v49, v{6+2*c}, s[80:83], s84 offen")
        A.e(f"buffer_store_dwordx2 v[50:51], v9, s[80:83], s84 offen offset:{32*c}")
    outp(0)
    for sidx in range(8):
        A.e(f"s_waitcnt lgkmcnt({7-sidx})")
        A.e(f"v_mfma_f32_16x16x32_bf16 {v(ACC+8,4)}, {v(G0+4*sidx,4)}, {v(FR2+4*sidx,4)}, {v(ACC+8,4)}")
        A.e(f"v_mfma_f32_16x16x32_bf16 {v(ACC+12,4)}, {v(FR2+4*sidx,4)}, {v(G1+4*sidx,4)}, {v(ACC+12,4)}")
    A.e("s_nop 7")
    a = ACC + 8
    A.e(f"v_cvt_pk_bf16_f32 v52, v{a}, v{a+1}"); A.e(f"v_cvt_pk_bf16_f32 v53, v{a+2}, v{a+3}")
    A.e(f"v_cvt_pk_bf16_f32 v54, v{a+4}, v{a+5}"); A.e(f"v_cvt_pk_bf16_f32 v55, v{a+6}, v{a+7}")
    A.e(f"buffer_store_dword v52, v7, s[80:83], s84 offen")
    A.e(f"buffer_store_dword v53, v8, s[80:83], s84 offen")
    A.e(f"buffer_store_dwordx2 v[54:55], v9, s[80:83], s84 offen offset:32")

def gen_aux(A, s_aux):
    skip = A.newlabel("L_noln")
    A.e(f"s_mul_i32 s88, s{S_W}, 20480")
    A.e(f"s_lshl_b32 s89, s{s_aux}, 4"); A.e(f"s_add_u32 s89, s89, s{S_W}")
    A.e("s_add_u32 s90, s89, 8")
    A.e("s_waitcnt lgkmcnt(0)")
    A.e(f"s_cmp_ge_u32 s{s_aux}, 32")
    A.e(f"s_cbranch_scc1 {skip}")
    gen_ln(A, s_aux)
    gen_ln_part2(A, s_aux)
    A.e("s_barrier")
    A.label(skip)
    gen_kgen_setup(A, 88)
    gen_kgen_loads(A, 89, 224)
    gen_kgen_loads(A, 90, 230)
    lp = A.newlabel("L_kg")
    A.e("s_mov_b32 s91, 0")
    A.e("s_waitcnt vmcnt(0)")
    A.label(lp)
    gen_kgen_body(A, 89, 224)
    for i in range(5): A.e(f"v_mov_b32 v{224+i}, v{230+i}")
    A.e("s_mov_b32 s89, s90")
    A.e("s_add_u32 s91, s91, 1")
    A.e("s_cmp_lt_u32 s91, 2")
    A.e(f"s_cbranch_scc1 {lp}")

G1_SLOT = 49152
G1_CS = 3 * G1_SLOT
G1_ST = G1_CS + 1024
G1_LDS = G1_ST + 4096

def gen_gemm1(A, s_mt, s_nt, s_unit, rot=True):
    Lc = A.newlabel("L_g1c"); Lend = A.newlabel("L_g1end")
    A.e(f"s_cmp_lt_u32 s{S_W}, 4")
    A.e(f"s_cbranch_scc1 {Lc}")
    A.e(f"s_sub_u32 s4, s{S_W}, 4")
    if rot:
        A.e(f"s_add_u32 s5, s{s_mt}, s{s_nt}"); A.e("s_mul_i32 s5, s5, 3")
        A.e("s_mul_i32 s6, s5, 6554"); A.e("s_lshr_b32 s6, s6, 16"); A.e("s_mul_i32 s6, s6, 10"); A.e("s_sub_u32 s5, s5, s6")
    else:
        A.e("s_mov_b32 s5, 0")
    A.e("v_lshrrev_b32 v1, 3, v0")
    A.e("v_and_b32 v2, 7, v0")
    A.e("s_and_b32 s6, s4, 1")
    A.e("v_lshrrev_b32 v3, 4, v0"); A.e("s_lshl_b32 s7, s6, 2"); A.e("v_or_b32 v3, s7, v3"); A.e("v_xor_b32 v3, v3, v2")
    A.e("v_mul_u32_u24 v4, 1280, v1"); A.e("v_lshl_add_u32 v4, v3, 4, v4")
    A.e("v_and_b32 v3, 2, v1"); A.e("v_or_b32 v3, s7, v3"); A.e("v_xor_b32 v3, v3, v2")
    A.e("v_mul_u32_u24 v5, 3456, v1"); A.e("v_lshl_add_u32 v5, v3, 4, v5")
    A.e(f"s_mul_i32 s8, s4, {8*3456}"); A.e(f"s_lshl_b32 s9, s{s_nt}, 7"); A.e("s_add_u32 s8, s8, s9")
    A.e(f"s_mul_i32 s9, s4, {8*1280}"); A.e(f"s_mul_i32 s10, s{s_mt}, {256*1280}"); A.e("s_add_u32 s9, s9, s10")
    A.e("s_lshl_b32 s10, s4, 10")
    A.e("s_waitcnt lgkmcnt(0)")
    srd(A, 44, P_U, L*D*2); srd(A, 48, P_W1, D*F*2); srd(A, 52, P_W3, D*F*2)
    def issue():
        A.e(f"s_mul_i32 s11, s5, {64*3456}"); A.e("s_add_u32 s11, s11, s8")
        A.e("s_lshl_b32 s12, s5, 7"); A.e("s_add_u32 s12, s12, s9")
        A.e("s_mov_b32 m0, s10"); A.e(f"s_add_u32 s13, s11, {32*3456}")
        A.e("buffer_load_dwordx4 v5, s[48:51], s11 offen lds")
        A.e("s_add_u32 m0, s10, 8192"); A.e("s_add_u32 s5, s5, 1")
        A.e("buffer_load_dwordx4 v5, s[52:55], s11 offen lds")
        for p in range(8):
            A.e(f"s_add_u32 m0, s10, {16384 + p*4096}")
            if p: A.e(f"s_add_u32 s12, s12, {32*1280}")
            else: A.e("s_cmp_eq_u32 s5, 10")
            if p == 0: A.e("s_cselect_b32 s5, 0, s5")
            A.e("buffer_load_dwordx4 v4, s[44:47], s12 offen lds")
        A.e("s_add_u32 m0, s10, 4096"); A.e("s_nop 0")
        A.e("buffer_load_dwordx4 v5, s[48:51], s13 offen lds")
        A.e("s_add_u32 m0, s10, 12288")
        A.e(f"s_add_u32 s10, s10, {G1_SLOT}")
        A.e("buffer_load_dwordx4 v5, s[52:55], s13 offen lds")
        A.e(f"s_cmp_ge_u32 s10, {3*G1_SLOT}"); A.e(f"s_cselect_b32 s11, {3*G1_SLOT}, 0"); A.e("s_sub_u32 s10, s10, s11")
    Lis = A.newlabel("L_g1pre")
    A.e("s_mov_b32 s14, 0")
    A.label(Lis)
    issue()
    A.e("s_add_u32 s14, s14, 1"); A.e("s_cmp_lt_u32 s14, 2"); A.e(f"s_cbranch_scc1 {Lis}")
    A.e("v_and_b32 v3, 2, v1"); A.e("v_xor_b32 v3, v3, v2")
    A.e("v_lshlrev_b32 v6, 7, v1"); A.e("v_lshl_add_u32 v6, v3, 4, v6")
    A.e("s_lshl_b32 s11, s4, 12"); A.e("v_add_u32 v6, s11, v6")
    A.e("v_xor_b32 v7, 64, v6")
    for i in range(8): A.e(f"v_mov_b32 v{8+i}, 0")
    A.e("s_mov_b32 s15, 0xffff0000")
    srd_off(A, 60, P_WS, WS_STATS, L*16); srd(A, 64, P_W2, F*D*2); srd_off(A, 68, P_WS, WS_W2T, F*D*2)
    A.e("s_lshl_b32 s11, s4, 6"); A.e("v_add_u32 v40, s11, v0")
    A.e("v_lshlrev_b32 v41, 3, v40")
    A.e("v_cmp_lt_u32 vcc, 159, v40"); A.e("v_mov_b32 v42, 0x40000000")
    A.e("v_mul_u32_u24 v43, 3277, v40"); A.e("v_lshrrev_b32 v43, 16, v43")
    A.e("v_cndmask_b32 v41, v41, v42, vcc")
    A.e("v_mul_u32_u24 v44, 20, v43"); A.e("v_sub_u32 v44, v40, v44")
    A.e("v_mul_u32_u24 v45, 13108, v44"); A.e("v_lshrrev_b32 v45, 16, v45")
    A.e("v_mul_u32_u24 v46, 5, v45"); A.e("v_sub_u32 v46, v44, v46")
    A.e(f"v_mul_u32_u24 v43, {54*5*1024}, v43"); A.e("v_lshl_add_u32 v43, v46, 10, v43"); A.e("v_lshl_add_u32 v43, v45, 6, v43")
    A.e("v_cndmask_b32 v43, v43, v42, vcc")
    A.e("v_lshlrev_b32 v47, 4, v40")
    A.e("s_mov_b32 s14, 0")
    A.e("s_mov_b32 s72, 0")
    A.e("s_waitcnt vmcnt(12)")
    Lh = A.newlabel("L_g1h"); Lx = A.newlabel("L_g1x"); Lcs = A.newlabel("L_g1cs"); Lfin = A.newlabel("L_g1fin")
    A.label(Lh)
    A.e("s_barrier")
    A.e("v_add_u32 v16, s72, v6"); A.e("v_add_u32 v17, s72, v7")
    for p in range(4):
        A.e(f"ds_read_b128 {v(20+4*p,4)}, v{16+(p&1)} offset:{p*1024}")
    A.e(f"s_add_u32 s72, s72, {G1_SLOT}"); A.e(f"s_cmp_ge_u32 s72, {3*G1_SLOT}"); A.e("s_cselect_b32 s72, 0, s72")
    A.e("s_cmp_ge_u32 s14, 8"); A.e(f"s_cbranch_scc1 {Lx}")
    issue()
    A.e(f"s_branch {Lcs}")
    A.label(Lx)
    A.e("s_cmp_eq_u32 s14, 9"); A.e(f"s_cbranch_scc1 {Lcs}")
    A.e(f"s_lshr_b32 s11, s{s_unit}, 2"); A.e(f"s_and_b32 s12, s{s_unit}, 3")
    A.e("s_lshl_b32 s13, s11, 5"); A.e("s_lshl_b32 s73, s12, 2"); A.e("s_add_u32 s13, s13, s73"); A.e("s_mul_i32 s13, s13, 1280")
    for jj in range(8):
        if jj == 4: A.e(f"s_add_u32 s13, s13, {16*1280}")
        A.e(f"buffer_load_dwordx2 {v(48+2*jj,2)}, v41, s[64:67], s13 offen offset:{(jj&3)*1280}")
    A.e(f"s_lshl_b32 s13, s{s_mt}, 12")
    A.e("buffer_load_dwordx4 v[64:67], v47, s[60:63], s13 offen")
    for _ in range(3): A.e("buffer_load_dword v68, v42, s[60:63], 0 offen")
    A.e("s_mul_i32 s73, s11, 5120"); A.e("s_lshl_b32 s12, s12, 8"); A.e("s_add_u32 s73, s73, s12")
    A.label(Lcs)
    for p in range(4):
        A.e(f"s_waitcnt lgkmcnt({3-p})")
        for j in range(4):
            A.e(f"v_lshlrev_b32 v{36+(j&1)*2}, 16, v{20+4*p+j}")
            A.e(f"v_and_b32 v{37+(j&1)*2}, s15, v{20+4*p+j}")
            A.e(f"v_add_f32 v{8+2*j}, v{8+2*j}, v{36+(j&1)*2}")
            A.e(f"v_add_f32 v{9+2*j}, v{9+2*j}, v{37+(j&1)*2}")
    A.e("s_add_u32 s14, s14, 1")
    A.e("s_cmp_eq_u32 s14, 10"); A.e(f"s_cbranch_scc1 {Lfin}")
    A.e("s_waitcnt vmcnt(12)")
    A.e(f"s_branch {Lh}")
    A.label(Lfin)
    for i in range(8): A.e(f"v_add_f32_dpp v{8+i}, v{8+i}, v{8+i} row_ror:8 row_mask:0xf bank_mask:0xf")
    for i in range(8): A.e(f"v_mov_b32 v{20+i}, v{8+i}")
    A.e("s_nop 1")
    for i in range(8): A.e(f"v_permlane16_swap_b32 v{8+i}, v{20+i}")
    for i in range(8): A.e(f"v_add_f32 v{8+i}, v{8+i}, v{20+i}")
    for i in range(8): A.e(f"v_mov_b32 v{20+i}, v{8+i}")
    A.e("s_nop 1")
    for i in range(8): A.e(f"v_permlane32_swap_b32 v{8+i}, v{20+i}")
    for i in range(8): A.e(f"v_add_f32 v{8+i}, v{8+i}, v{20+i}")
    A.e("v_lshlrev_b32 v16, 5, v2"); A.e("s_lshl_b32 s11, s4, 8"); A.e(f"s_add_u32 s11, s11, {G1_CS}"); A.e("v_add_u32 v16, s11, v16")
    A.e("ds_write_b128 v16, v[8:11]"); A.e("ds_write_b128 v16, v[12:15] offset:16")
    A.e(f"v_add_u32 v47, {G1_ST}, v47")
    A.e("s_waitcnt vmcnt(0)")
    A.e("ds_write_b128 v47, v[64:67]")
    A.e("s_waitcnt lgkmcnt(0)")
    A.e("s_barrier")
    A.e("s_mov_b32 s11, 0x05040100"); A.e("s_mov_b32 s12, 0x07060302")
    for c in range(4):
        for p in range(4):
            lo = 48 + 2*(2*p) + (c >> 1); hi = 48 + 2*(2*p+1) + (c >> 1)
            A.e(f"v_perm_b32 v{72+4*c+p}, v{hi}, v{lo}, s{11 + (c & 1)}")
        A.e(f"buffer_store_dwordx4 {v(72+4*c,4)}, v43, s[68:71], s73 offen offset:{16*c}")
    A.e(f"s_branch {Lend}")
    A.label(Lc)
    A.e(f"s_lshr_b32 s4, s{S_W}, 1")
    A.e(f"s_and_b32 s5, s{S_W}, 1")
    A.e("v_and_b32 v6, 15, v0"); A.e("v_lshrrev_b32 v7, 4, v0"); A.e("v_lshrrev_b32 v8, 1, v6")
    A.e("s_lshl_b32 s6, s4, 14"); A.e("s_add_u32 s6, s6, 16384")
    for h in range(2):
        A.e(f"v_add_u32 v9, {4*h}, v7"); A.e("v_xor_b32 v9, v9, v8"); A.e("v_lshlrev_b32 v9, 4, v9")
        A.e(f"v_lshl_add_u32 v{10+h}, v6, 7, v9"); A.e(f"v_add_u32 v{10+h}, s6, v{10+h}")
    A.e("v_lshrrev_b32 v15, 2, v6"); A.e("v_and_b32 v9, 3, v6"); A.e("v_lshlrev_b32 v9, 3, v9")
    A.e("v_lshrrev_b32 v17, 1, v15"); A.e("v_and_b32 v16, 1, v7"); A.e("v_lshl_add_u32 v17, v16, 1, v17")
    A.e("v_lshl_add_u32 v15, v7, 3, v15")
    A.e("s_lshl_b32 s6, s5, 1")
    A.e("v_xor_b32 v17, s6, v17")
    for t in range(2):
        A.e(f"v_xor_b32 v18, {t}, v17"); A.e("v_lshl_add_u32 v18, v18, 5, v9"); A.e(f"v_lshl_add_u32 v{12+t}, v15, 7, v18")
    ACC = 128; FB = 32; FS = 48
    for i in range(128): A.e(f"v_mov_b32 v{ACC+i}, 0")
    def reads(h, buf):
        b = FB + buf*FS
        R = []
        for m in range(2):
            for t in range(2):
                w = b + 32 + (2*m+t)*4
                R.append(f"ds_read_b64_tr_b16 {v(w,2)}, v{12+t} offset:{m*8192 + h*4096}")
                R.append(f"ds_read_b64_tr_b16 {v(w+2,2)}, v{12+t} offset:{m*8192 + h*4096 + 512}")
        R += [f"ds_read_b128 {v(b+4*j,4)}, v{10+h} offset:{j*2048}" for j in range(8)]
        return R
    def mfmas(buf):
        b = FB + buf*FS
        return [f"v_mfma_f32_16x16x32_bf16 {v(ACC+4*(4*j+c),4)}, {v(b+32+4*c,4)}, {v(b+4*j,4)}, {v(ACC+4*(4*j+c),4)}"
                for j in range(8) for c in range(4)]
    A.e("s_mov_b32 s7, 0")
    A.e("s_mov_b32 s8, 0")
    A.e("s_waitcnt lgkmcnt(0)")
    srd_off(A, 56, P_WS, WS_H, L*F*2)
    A.e("s_barrier")
    A.e(reads(0, 0))
    Ll = A.newlabel("L_g1loop")
    A.label(Ll)
    A.e("s_add_u32 s8, s8, 1"); A.e("s_cmp_eq_u32 s8, 3"); A.e("s_cselect_b32 s8, 0, s8")
    A.e(f"s_cselect_b32 s9, {(-2*G1_SLOT) & 0xffffffff}, {G1_SLOT}") if False else None
    A.e(f"s_mov_b32 s9, {G1_SLOT}"); A.e(f"s_cmov_b32 s9, {(-2*G1_SLOT) & 0xffffffff}")
    A.e("s_waitcnt lgkmcnt(0)")
    spread(A, mfmas(0), reads(1, 1) + [f"v_add_u32 v{10+i}, s9, v{10+i}" for i in range(4)], 0.8)
    A.e("s_waitcnt lgkmcnt(0)")
    A.e("s_barrier")
    spread(A, mfmas(1), reads(0, 0) + ["s_add_u32 s7, s7, 1", "s_cmp_lt_u32 s7, 10"], 0.75)
    A.e(f"s_cbranch_scc1 {Ll}")
    A.e("s_waitcnt lgkmcnt(0)")
    A.e("v_lshlrev_b32 v2, 4, v7"); A.e("s_lshl_b32 s6, s5, 7"); A.e(f"s_add_u32 s6, s6, {G1_CS}"); A.e("v_add_u32 v2, s6, v2")
    CS = 32
    for c in range(4):
        m, t = c >> 1, c & 1
        A.e(f"ds_read_b128 {v(CS+4*c,4)}, v2 offset:{m*512 + t*64}")
        A.e(f"ds_read_b128 {v(CS+16+4*c,4)}, v2 offset:{m*512 + 256 + t*64}")
    A.e("v_lshlrev_b32 v3, 4, v6"); A.e("s_lshl_b32 s6, s4, 11"); A.e(f"s_add_u32 s6, s6, {G1_ST}"); A.e("v_add_u32 v3, s6, v3")
    ST = 64
    for j in range(8): A.e(f"ds_read_b128 {v(ST+4*j,4)}, v3 offset:{j*256}")
    A.e("v_lshlrev_b32 v4, 4, v0")
    A.e(f"s_lshl_b32 s6, s{s_mt}, 2"); A.e("s_lshl_b32 s9, s4, 1"); A.e("s_add_u32 s6, s6, s9"); A.e("s_mul_i32 s6, s6, 54")
    A.e(f"s_lshl_b32 s9, s{s_nt}, 1"); A.e("s_add_u32 s6, s6, s9"); A.e("s_add_u32 s6, s6, s5"); A.e("s_lshl_b32 s6, s6, 12")
    A.e("s_waitcnt lgkmcnt(8)")
    for i in range(8): A.e(f"v_pk_add_f32 {v(CS+2*i,2)}, {v(CS+2*i,2)}, {v(CS+16+2*i,2)}")
    T = 96
    for j in range(8):
        if j == 4: A.e(f"s_add_u32 s6, s6, {54*4096}")
        A.e(f"s_waitcnt lgkmcnt({7-j})")
        g = ACC + 16*j; u = g + 8; S = ST + 4*j; t = T + 8*(j & 1); o = 112 + 4*(j & 3)
        for p in range(4): A.e(f"v_pk_fma_f32 {v(g+2*p,2)}, {v(CS+2*p,2)}, {v(S,2)}, {v(g+2*p,2)} op_sel_hi:[1,0,1] neg_lo:[0,1,0] neg_hi:[0,1,0]")
        for p in range(4): A.e(f"v_pk_mul_f32 {v(t+2*p,2)}, {v(g+2*p,2)}, {v(S,2)} op_sel:[0,1] op_sel_hi:[1,1]")
        for p in range(8): A.e(f"v_exp_f32 v{t+p}, v{t+p}")
        for p in range(4): A.e(f"v_pk_fma_f32 {v(u+2*p,2)}, {v(CS+8+2*p,2)}, {v(S,2)}, {v(u+2*p,2)} op_sel_hi:[1,0,1] neg_lo:[0,1,0] neg_hi:[0,1,0]")
        for p in range(4): A.e(f"v_pk_fma_f32 {v(t+2*p,2)}, {v(t+2*p,2)}, {v(S+2,2)}, {v(S+2,2)} op_sel_hi:[1,0,0]")
        for p in range(8): A.e(f"v_rcp_f32 v{t+p}, v{t+p}")
        for p in range(4): A.e(f"v_pk_mul_f32 {v(g+2*p,2)}, {v(g+2*p,2)}, {v(u+2*p,2)}")
        for p in range(4): A.e(f"v_pk_mul_f32 {v(g+2*p,2)}, {v(g+2*p,2)}, {v(t+2*p,2)}")
        for p in range(4): A.e(f"v_cvt_pk_bf16_f32 v{o+p}, v{g+2*p}, v{g+2*p+1}")
        A.e(f"buffer_store_dwordx4 {v(o,4)}, v4, s[56:59], s6 offen offset:{(j&3)*1024}")
    A.label(Lend)

CV_COPY = 4160
CV_U = 4 * CV_COPY
CV_LDS = CV_U + 4608
def gen_conv(A, s_ch, s_lds, sc1=False):
    srd_off(A, 44, P_WS, WS_KC, D*KC_STRIDE)
    srd_off(A, 48, P_WS, WS_XNT, D*4096)
    srd_off(A, 52, P_WS, WS_YT, D*4096)
    srd(A, 56, P_DSK, D*2)
    A.e(f"s_mul_i32 s60, s{s_ch}, {KC_STRIDE}")
    A.e("v_lshlrev_b32 v1, 3, v0"); A.e("v_lshlrev_b32 v2, 2, v0"); A.e("v_lshlrev_b32 v3, 4, v0")
    A.e("buffer_load_dwordx4 v[8:11], v1, s[44:47], s60 offen")
    A.e("buffer_load_dwordx2 v[12:13], v2, s[44:47], s60 offen offset:512")
    A.e("buffer_load_dwordx2 v[14:15], v2, s[44:47], s60 offen offset:768")
    A.e("buffer_load_dwordx2 v[16:17], v2, s[44:47], s60 offen offset:1024")
    A.e(f"s_lshl_b32 s61, s{s_ch}, 12")
    A.e(f"s_add_u32 m0, s{s_lds}, {CV_U + 512}")
    A.e(f"s_lshl_b32 s62, s{s_ch}, 1")
    for i in range(4):
        A.e(f"buffer_load_dwordx4 v3, s[48:51], s61 offen offset:{i*1024} lds")
    A.e("buffer_load_ushort v18, off, s[56:59], s62")
    A.e("v_mov_b32 v20, 0"); A.e("v_mov_b32 v21, 0")
    A.e(f"v_add_u32 v4, s{s_lds}, v1")
    A.e(f"ds_write_b64 v4, v[20:21] offset:{CV_U}")
    A.e("v_and_b32 v5, 3, v0"); A.e("v_bfe_u32 v6, v0, 2, 2")
    A.e(f"v_mul_u32_u24 v6, {CV_COPY}, v6"); A.e("v_lshl_add_u32 v6, v5, 3, v6"); A.e(f"v_add_u32 v6, s{s_lds}, v6")
    A.e("ds_write_b64 v6, v[20:21]")
    A.e("s_mov_b32 s60, 0x01000100")
    A.e("s_mov_b32 s63, 0x03020302")
    A.e("v_cmp_eq_u32 vcc, 63, v0")
    A.e("v_mov_b32 v22, 0x03020100"); A.e("v_mov_b32 v23, 0x01000100"); A.e("v_cndmask_b32 v22, v22, v23, vcc")
    A.e("v_mov_b32 v24, 0x07060504"); A.e("v_mov_b32 v23, 0x03020302"); A.e("v_cndmask_b32 v24, v24, v23, vcc")
    A.e(f"v_add_u32 v5, s{s_lds}, v3")
    A.e("v_add_u32 v7, v5, v3")
    lo = lambda d, x: f"v_perm_b32 v{d}, v{x}, v{x}, s60"
    hi = lambda d, x: f"v_perm_b32 v{d}, v{x}, v{x}, s63"
    al = lambda d, x1, x0: f"v_alignbit_b32 v{d}, v{x1}, v{x0}, 16"
    mv = lambda d, x: f"v_mov_b32 v{d}, v{x}"
    A.e("s_waitcnt vmcnt(8)")
    A.e("v_perm_b32 v11, v11, v10, v24"); A.e("v_perm_b32 v10, v10, v10, v22")
    A.e([al(32, 9, 8), al(33, 10, 9), mv(34, 9), mv(35, 10), al(36, 10, 9), al(37, 11, 10), "v_lshlrev_b32 v38, 16, v8", al(39, 9, 8)])
    A.e(f"ds_write_b64 v4, v[8:9] offset:{32}")
    A.e(f"ds_write_b64 v4, v[32:33] offset:{32 + CV_COPY}")
    A.e(f"ds_write_b64 v4, v[34:35] offset:{32 + 2*CV_COPY}")
    A.e(f"ds_write_b64 v4, v[36:37] offset:{32 + 3*CV_COPY}")
    A.e("s_mov_b64 exec, 1")
    A.e(f"ds_write_b32 v4, v38 offset:{28 + CV_COPY}")
    A.e(f"ds_write_b32 v4, v8 offset:{28 + 2*CV_COPY}")
    A.e(f"ds_write_b64 v4, v[38:39] offset:{24 + 3*CV_COPY}")
    A.e("s_mov_b64 exec, -1")
    A.e("s_waitcnt vmcnt(7)")
    A.e("v_perm_b32 v13, v13, v13, v22")
    A.e([lo(40, 12), al(41, 13, 12), mv(42, 12), lo(43, 13), al(44, 13, 12), lo(45, 13), lo(46, 13), mv(47, 13)])
    for sft in range(4):
        A.e(f"ds_write_b64 v4, {v(40+2*sft,2)} offset:{32 + 512 + sft*CV_COPY}")
    A.e("s_waitcnt vmcnt(6)")
    A.e([lo(48, 14), mv(49, 14), hi(50, 14), lo(51, 15),
         lo(52, 14), hi(53, 14), al(54, 15, 14), lo(55, 15),
         mv(56, 14), hi(57, 14), lo(58, 15), lo(59, 15),
         hi(60, 14), al(61, 15, 14), lo(62, 15), lo(63, 15)])
    for sft in range(4):
        A.e(f"ds_write_b128 v5, {v(48+4*sft,4)} offset:{32 + 1024 + sft*CV_COPY}")
    A.e("s_waitcnt vmcnt(5)")
    pat = ["aa aa ab bb bb bb cc cc", "aa aa bb bb bb bc cc cc", "aa ab bb bb bb cc cc cc", "aa bb bb bb bc cc cc cc"]
    for sft in range(4):
        b = 64 + 8*sft
        for i, t in enumerate(pat[sft].split()):
            A.e({"aa": lo(b+i, 16), "bb": hi(b+i, 16), "cc": lo(b+i, 17), "ab": mv(b+i, 16), "bc": al(b+i, 17, 16)}[t])
        A.e(f"ds_write_b128 v7, {v(b,4)} offset:{32 + 2048 + sft*CV_COPY}")
        A.e(f"ds_write_b128 v7, {v(b+4,4)} offset:{32 + 2048 + 16 + sft*CV_COPY}")
    A.e("v_and_b32 v8, 3, v0"); A.e("v_bfe_u32 v9, v0, 2, 2"); A.e("v_lshrrev_b32 v10, 4, v0"); A.e("v_and_b32 v11, 15, v0")
    A.e("v_sub_u32 v12, 4, v9"); A.e("v_and_b32 v12, 3, v12"); A.e(f"v_mul_u32_u24 v12, {CV_COPY}, v12")
    A.e("v_lshl_add_u32 v12, v8, 3, v12")
    A.e("v_min_u32 v13, 1, v9"); A.e("v_lshl_add_u32 v13, v10, 1, v13"); A.e("v_lshlrev_b32 v13, 3, v13")
    A.e("v_sub_u32 v12, v12, v13"); A.e("v_add_u32 v12, 56, v12"); A.e(f"v_add_u32 v12, s{s_lds}, v12")
    A.e("v_lshlrev_b32 v13, 5, v11"); A.e("v_lshl_add_u32 v13, v10, 4, v13")
    A.e(f"v_add_u32 v13, {CV_U + 512 - 32}, v13"); A.e(f"v_add_u32 v13, s{s_lds}, v13")
    ACC = 32; FA = 64; FBf = 96; FS = 64
    for i in range(32): A.e(f"v_mov_b32 v{ACC+i}, 0")
    def reads(buf):
        R = []
        for i in range(8):
            a = FA + buf*FS + 4*i; b = FBf + buf*FS + 4*i
            R.append(f"ds_read_b128 {v(b,4)}, v13 offset:{512*i}")
            R.append(f"ds_read_b64_tr_b16 {v(a,2)}, v12 offset:{512*i + 8}")
            R.append(f"ds_read_b64_tr_b16 {v(a+2,2)}, v12 offset:{512*i}")
        R.append("v_add_u32 v12, 64, v12"); R.append("v_subrev_u32 v13, 64, v13")
        return R
    def mfmas(buf):
        M = []
        for q1 in range(8):
            for tp in range(8 - q1):
                t = q1 + tp
                M.append(f"v_mfma_f32_16x16x32_bf16 {v(ACC+4*t,4)}, {v(FA+buf*FS+4*q1,4)}, {v(FBf+buf*FS+4*tp,4)}, {v(ACC+4*t,4)}")
        return M
    A.e("s_waitcnt vmcnt(0)")
    A.e(reads(0))
    A.e("s_mov_b32 s60, 0")
    Ll = A.newlabel("L_cv")
    A.label(Ll)
    A.e("s_waitcnt lgkmcnt(0)")
    spread(A, mfmas(0), reads(1), 0.8)
    A.e("s_waitcnt lgkmcnt(0)")
    spread(A, mfmas(1), reads(0) + ["s_add_u32 s60, s60, 1", "s_cmp_lt_u32 s60, 4"], 0.8)
    A.e(f"s_cbranch_scc1 {Ll}")
    A.e("s_waitcnt lgkmcnt(0)")
    A.e("v_lshlrev_b32 v14, 5, v11"); A.e("v_lshl_add_u32 v14, v10, 3, v14"); A.e(f"v_add_u32 v15, s{s_lds}, v14")
    for t in range(8): A.e(f"ds_read_b64 {v(64+2*t,2)}, v15 offset:{CV_U + 512 + 512*t}")
    A.e("v_lshlrev_b32 v18, 16, v18")
    A.e("s_mov_b32 s60, 0xffff0000")
    A.e("v_lshlrev_b32 v16, 5, v11"); A.e("v_lshrrev_b32 v17, 1, v10"); A.e("v_lshl_add_u32 v16, v17, 4, v16")
    A.e("v_and_b32 v17, 1, v10"); A.e("v_lshl_add_u32 v16, v17, 9, v16")
    for t in range(8):
        A.e(f"s_waitcnt lgkmcnt({7-t})")
        a = ACC + 4*t; u = 80 + 4*(t & 1)
        A.e(f"v_lshlrev_b32 v{u}, 16, v{64+2*t}"); A.e(f"v_and_b32 v{u+1}, s60, v{64+2*t}")
        A.e(f"v_lshlrev_b32 v{u+2}, 16, v{65+2*t}"); A.e(f"v_and_b32 v{u+3}, s60, v{65+2*t}")
        A.e(f"v_pk_fma_f32 {v(a,2)}, {v(u,2)}, v[18:19], {v(a,2)} op_sel_hi:[1,0,1]")
        A.e(f"v_pk_fma_f32 {v(a+2,2)}, {v(u+2,2)}, v[18:19], {v(a+2,2)} op_sel_hi:[1,0,1]")
        o = 96 + 4*(t >> 1) + 2*(t & 1)
        A.e(f"v_cvt_pk_bf16_f32 v{o}, v{a}, v{a+1}"); A.e(f"v_cvt_pk_bf16_f32 v{o+1}, v{a+2}, v{a+3}")
        if t & 1:
            o = 96 + 4*(t >> 1)
            A.e("s_nop 1")
            A.e(f"v_permlane16_swap_b32 v{o}, v{o+2}"); A.e(f"v_permlane16_swap_b32 v{o+1}, v{o+3}")
            A.e(f"buffer_store_dwordx4 {v(o,4)}, v16, s[52:55], s61 offen offset:{512*(t-1)}" + (" sc1" if sc1 else ""))

G2_X = 0
G2_Y = 61440
G2_YS = 144
G2_LDS = G2_Y + 80 * G2_YS
def gen_gemm2(A, s_mt, s_nt, depth=4, rot=True):
    srd_off(A, 44, P_WS, WS_H, L*F*2); srd_off(A, 48, P_WS, WS_W2T, F*D*2)
    srd(A, 52, P_U, L*D*2); srd(A, 56, P_OUT, L*D*2); srd_off(A, 60, P_WS, WS_YT, D*4096)
    A.e("v_lshlrev_b32 v1, 4, v0")
    for lam in range(4):
        A.e(f"s_add_u32 s4, s{S_W}, {lam}"); A.e("s_and_b32 s4, s4, 3"); A.e("s_lshl_b32 s4, s4, 10")
        A.e(f"v_add_u32 v{2+lam}, s4, v1")
    A.e("v_add_u32 v6, 4096, v1")
    if rot:
        A.e(f"s_and_b32 s4, s{s_mt}, 7"); A.e("s_mul_i32 s4, s4, 7"); A.e(f"s_mul_i32 s5, s{s_nt}, 13"); A.e("s_add_u32 s4, s4, s5")
        A.e(f"s_add_u32 s4, s4, s{S_W}")
        A.e("s_mul_i32 s5, s4, 1214"); A.e("s_lshr_b32 s5, s5, 16"); A.e("s_mul_i32 s5, s5, 54"); A.e("s_sub_u32 s4, s4, s5")
    else:
        A.e(f"s_mov_b32 s4, s{S_W}")
    A.e(f"s_mul_i32 s6, s{s_mt}, {54*4096}"); A.e(f"s_mul_i32 s7, s{s_nt}, {54*5120}")
    A.e(f"s_mov_b32 s8, s{S_W}")
    A.e(f"s_mov_b32 s9, s{S_W}")
    ACC = 16; FB = 96
    def issue(slot):
        b = FB + 36*slot
        A.e("s_lshl_b32 s10, s4, 12"); A.e("s_add_u32 s10, s10, s6")
        A.e("s_mul_i32 s11, s4, 5120"); A.e("s_add_u32 s11, s11, s7")
        A.e("s_cmp_ge_u32 s8, 54"); A.e("s_cmov_b32 s10, 0x40000000"); A.e("s_cmov_b32 s11, 0x40000000")
        for t in range(4): A.e(f"buffer_load_dwordx4 {v(b+16+4*t,4)}, v1, s[48:51], s11 offen offset:{t*1024}")
        A.e(f"buffer_load_dwordx4 {v(b+32,4)}, v6, s[48:51], s11 offen")
        for lam in range(4): A.e(f"buffer_load_dwordx4 {v(b+4*lam,4)}, v{2+lam}, s[44:47], s10 offen")
        A.e("s_add_u32 s4, s4, 4"); A.e("s_cmp_ge_u32 s4, 54"); A.e("s_cselect_b32 s10, 54, 0"); A.e("s_sub_u32 s4, s4, s10")
        A.e("s_add_u32 s8, s8, 4")
    for d in range(depth - 1): issue(d)
    for i in range(80): A.e(f"v_mov_b32 v{ACC+i}, 0")
    Ll = A.newlabel("L_g2"); Le = A.newlabel("L_g2e")
    A.label(Ll)
    for d in range(depth):
        issue((d + depth - 1) % depth)
        A.e(f"s_waitcnt vmcnt({9*(depth-1)})")
        b = FB + 36*d
        for lam in range(4):
            for t in range(5):
                a = ACC + 4*(5*lam + t)
                A.e(f"v_mfma_f32_16x16x32_bf16 {v(a,4)}, {v(b+16+4*t,4)}, {v(b+4*lam,4)}, {v(a,4)}")
        A.e("s_add_u32 s9, s9, 4"); A.e("s_cmp_ge_u32 s9, 54")
        if d < depth - 1: A.e(f"s_cbranch_scc1 {Le}")
        else: A.e(f"s_cbranch_scc0 {Ll}")
    A.label(Le)
    A.e("v_and_b32 v7, 15, v0"); A.e("v_lshrrev_b32 v8, 4, v0")
    A.e("v_mul_u32_u24 v9, 1280, v7"); A.e("v_mul_u32_u24 v10, 40, v8"); A.e("v_add_u32 v9, v9, v10")
    A.e(f"s_lshl_b32 s4, s{s_mt}, 2"); A.e(f"s_add_u32 s4, s4, s{S_W}"); A.e(f"s_mul_i32 s4, s4, {16*1280}")
    A.e(f"s_mul_i32 s5, s{s_nt}, 160"); A.e("s_add_u32 s4, s4, s5")
    A.e("s_waitcnt vmcnt(0)")
    XR = 96
    A.e(f"buffer_load_dwordx4 {v(XR,4)}, v9, s[52:55], s4 offen")
    A.e(f"buffer_load_dwordx4 {v(XR+4,4)}, v9, s[52:55], s4 offen offset:16")
    A.e(f"buffer_load_dwordx2 {v(XR+8,2)}, v9, s[52:55], s4 offen offset:32")
    A.e(f"s_lshl_b32 s5, s{S_W}, 3"); A.e("v_lshrrev_b32 v10, 3, v0"); A.e("v_add_u32 v10, s5, v10")
    A.e("v_and_b32 v11, 7, v0"); A.e("v_lshlrev_b32 v11, 4, v11")
    A.e("v_lshl_add_u32 v12, v10, 12, v11")
    A.e(f"v_mul_u32_u24 v13, {G2_YS}, v10"); A.e("v_add_u32 v13, v13, v11")
    A.e(f"s_mul_i32 s5, s{s_nt}, {80*4096}"); A.e(f"s_lshl_b32 s6, s{s_mt}, 7"); A.e("s_add_u32 s5, s5, s6")
    YR = 108
    A.e(f"buffer_load_dwordx4 {v(YR,4)}, v12, s[60:63], s5 offen")
    A.e(f"s_add_u32 s5, s5, {32*4096}")
    A.e(f"buffer_load_dwordx4 {v(YR+4,4)}, v12, s[60:63], s5 offen")
    A.e(f"s_add_u32 s5, s5, {32*4096}")
    A.e(f"s_cmp_ge_u32 s{S_W}, 2"); A.e("s_cmov_b32 s5, 0x40000000")
    A.e(f"buffer_load_dwordx4 {v(YR+8,4)}, v12, s[60:63], s5 offen")
    for lam in range(1, 4):
        A.e(f"s_add_u32 s6, s{S_W}, {lam}"); A.e("s_and_b32 s6, s6, 3"); A.e("s_mul_i32 s6, s6, 15360")
        A.e("v_add_u32 v14, s6, v1")
        for t in range(5):
            A.e(f"ds_write_b128 v14, {v(ACC+4*(5*lam+t),4)} offset:{G2_X + (lam-1)*5120 + t*1024}")
    A.e("s_waitcnt vmcnt(0)")
    A.e(f"ds_write_b128 v13, {v(YR,4)} offset:{G2_Y}")
    A.e(f"v_add_u32 v13, {32*G2_YS}, v13")
    A.e(f"ds_write_b128 v13, {v(YR+4,4)} offset:{G2_Y}")
    Ls = A.newlabel("L_g2s")
    A.e(f"s_cmp_ge_u32 s{S_W}, 2"); A.e(f"s_cbranch_scc1 {Ls}")
    A.e(f"v_add_u32 v13, {32*G2_YS}, v13")
    A.e(f"ds_write_b128 v13, {v(YR+8,4)} offset:{G2_Y}")
    A.label(Ls)
    A.e(f"s_mul_i32 s6, s{S_W}, 15360"); A.e("v_add_u32 v14, s6, v1")
    A.e("v_mul_u32_u24 v10, 20, v8"); A.e("v_lshrrev_b32 v11, 2, v7"); A.e("v_add_u32 v10, v10, v11"); A.e(f"v_mul_u32_u24 v10, {G2_YS}, v10")
    A.e("v_and_b32 v11, 3, v0"); A.e("v_lshl_add_u32 v10, v11, 3, v10"); A.e(f"s_lshl_b32 s6, s{S_W}, 5"); A.e(f"s_add_u32 s6, s6, {G2_Y}"); A.e("v_add_u32 v10, s6, v10")
    A.e("s_waitcnt lgkmcnt(0)")
    A.e("s_barrier")
    PR = 128; YT = 120
    YT = 188
    for t in range(5):
        for k in range(3):
            A.e(f"ds_read_b128 {v(PR+4*(3*t+k),4)}, v14 offset:{G2_X + k*5120 + t*1024}")
        A.e(f"ds_read_b64_tr_b16 {v(YT+2*t,2)}, v10 offset:{4*t*G2_YS}")
    A.e("s_mov_b32 s6, 0xffff0000")
    O = 200
    for t in range(5):
        a = ACC + 4*t
        for hh in range(2):
            A.e(f"v_lshlrev_b32 v{212+2*hh}, 16, v{XR+2*t+hh}"); A.e(f"v_and_b32 v{213+2*hh}, s6, v{XR+2*t+hh}")
        for hh in range(2): A.e(f"v_pk_add_f32 {v(a+2*hh,2)}, {v(a+2*hh,2)}, {v(212+2*hh,2)}")
        A.e(f"s_waitcnt lgkmcnt({min(15, 4*(4-t))})")
        for k in range(3):
            for hh in range(2): A.e(f"v_pk_add_f32 {v(a+2*hh,2)}, {v(a+2*hh,2)}, {v(PR+4*(3*t+k)+2*hh,2)}")
        for hh in range(2):
            A.e(f"v_lshlrev_b32 v{216+2*hh}, 16, v{YT+2*t+hh}"); A.e(f"v_and_b32 v{217+2*hh}, s6, v{YT+2*t+hh}")
        for hh in range(2): A.e(f"v_pk_add_f32 {v(a+2*hh,2)}, {v(a+2*hh,2)}, {v(216+2*hh,2)}")
        for hh in range(2): A.e(f"v_cvt_pk_bf16_f32 v{O+2*t+hh}, v{a+2*hh}, v{a+2*hh+1}")
    A.e(f"buffer_store_dwordx4 {v(O,4)}, v9, s[56:59], s4 offen")
    A.e(f"buffer_store_dwordx4 {v(O+4,4)}, v9, s[56:59], s4 offen offset:16")
    A.e(f"buffer_store_dwordx2 {v(O+8,2)}, v9, s[56:59], s4 offen offset:32")
```

```python
import sys
from comp import *
NAME = "parallel_sum__ssm_conv_s4d__glu_gated_swiglu__prompt"
A = Asm()
A.raw("; @launch kernel=aux_kernel grid=(40,1,1) block=(512,1,1) lds=163840")
A.raw(f"; @launch kernel=gemm1_kernel grid=(216,1,1) block=(512,1,1) lds={G1_LDS}")
A.raw(f"; @launch kernel=conv_kernel grid=(160,1,1) block=(256,1,1) lds={4*CV_LDS}")
A.raw(f"; @launch kernel=gemm2_kernel grid=(256,1,1) block=(256,1,1) lds=90112")
A.raw('.amdgcn_target "amdgcn-amd-amdhsa--gfx950"')
A.raw(".text")
kernel_begin(A, "aux_kernel")
A.e("s_cmp_ge_u32 s2, 40"); A.e("s_cbranch_scc1 L_aux_end")
prologue(A)
gen_aux(A, 2)
A.label("L_aux_end"); A.e("s_endpgm")
kernel_begin(A, "gemm1_kernel")
A.e("s_cmp_ge_u32 s2, 216"); A.e("s_cbranch_scc1 L_g1_end")
prologue(A)
A.e("s_and_b32 s94, s2, 7"); A.e("s_lshr_b32 s95, s2, 3")
A.e("s_lshr_b32 s96, s94, 1"); A.e("s_mul_i32 s96, s96, 27"); A.e("s_add_u32 s96, s96, s95")
A.e("s_lshr_b32 s93, s96, 2")
A.e("s_and_b32 s92, s96, 3"); A.e("s_and_b32 s94, s94, 1"); A.e("s_lshl_b32 s94, s94, 2"); A.e("s_add_u32 s92, s92, s94")
gen_gemm1(A, 92, 93, 2)
A.label("L_g1_end"); A.e("s_endpgm")
kernel_begin(A, "conv_kernel")
A.e("s_cmp_ge_u32 s2, 160"); A.e("s_cbranch_scc1 L_cv_end")
prologue(A)
A.e("s_lshl_b32 s92, s2, 2"); A.e(f"s_add_u32 s92, s92, s{S_W}"); A.e(f"s_mul_i32 s93, s{S_W}, {CV_LDS}")
A.e("s_waitcnt lgkmcnt(0)")
gen_conv(A, 92, 93)
A.label("L_cv_end"); A.e("s_endpgm")
kernel_begin(A, "gemm2_kernel")
A.e("s_cmp_ge_u32 s2, 256"); A.e("s_cbranch_scc1 L_g2_end")
prologue(A)
A.e("s_and_b32 s94, s2, 7"); A.e("s_lshr_b32 s95, s2, 3")
A.e("s_lshr_b32 s92, s94, 1"); A.e("s_lshl_b32 s92, s92, 3"); A.e("s_and_b32 s96, s95, 7"); A.e("s_add_u32 s92, s92, s96")
A.e("s_and_b32 s93, s94, 1"); A.e("s_lshl_b32 s93, s93, 2"); A.e("s_lshr_b32 s96, s95, 3"); A.e("s_add_u32 s93, s93, s96")
A.e("s_waitcnt lgkmcnt(0)")
gen_gemm2(A, 92, 93)
A.label("L_g2_end"); A.e("s_endpgm")
A.raw('.section .rodata,"a"')
for k in ("aux_kernel", "gemm1_kernel", "conv_kernel", "gemm2_kernel"):
    A.raw(".p2align 6")
    A.raw(descriptor(k, 256))
open(sys.argv[1], "w").write(A.text())
```
